```python
import torch

def _softmax(x, axis=-1):
    return torch.softmax(x, dim=axis)
def _gelu(x):
    return torch.nn.functional.gelu(x, approximate="tanh")
def _silu(x):
    return torch.nn.functional.silu(x)
def _sigmoid(x):
    return torch.sigmoid(x)
def _layernorm(x, axis=-1, eps=1e-5):
    m = x.mean(dim=axis, keepdim=True)
    v = x.var(dim=axis, keepdim=True, unbiased=False)
    return (x - m) / torch.sqrt(v + eps)
def _scatter_add(tgt, idx, src, axis=0):
    return tgt.clone().index_add_(axis, idx, src)
def _segment_sum(src, seg, n):
    out = torch.zeros((n,) + src.shape[1:], dtype=src.dtype)
    return out.index_add_(0, seg, src)
def _pad(x, pw):
    flat = tuple(v for pair in reversed(pw) for v in pair)
    return torch.nn.functional.pad(x, flat)

kernel_name = 'standalone__spectral_fnet__prompt'

def setup_inputs():

    _w = (lambda a: (lambda t: t.to(torch.bfloat16) if t.is_floating_point() else t)(torch.as_tensor(a)))
    B, S, D = 1, 2048, 1024
    ns = torch.arange(S)[:, None] * torch.arange(S)[None, :]
    nd = torch.arange(D)[:, None] * torch.arange(D)[None, :]
    Ws_re = torch.cos(-2.0 * torch.pi * ns / S).to(float)
    Ws_im = torch.sin(-2.0 * torch.pi * ns / S).to(float)
    Wd_re = torch.cos(-2.0 * torch.pi * nd / D).to(float)
    Wd_im = torch.sin(-2.0 * torch.pi * nd / D).to(float)
    return {
        "x": _w((lambda *s: torch.randn(*s, dtype=torch.bfloat16) * 0.05)(B, S, D)),
        "dft_seq_re": _w(Ws_re),
        "dft_seq_im": _w(Ws_im),
        "dft_hid_re": _w(Wd_re),
        "dft_hid_im": _w(Wd_im),
    }

def reference(x, dft_seq_re, dft_seq_im, dft_hid_re, dft_hid_im):
    a = torch.einsum("bsd,ed->bse", x, dft_hid_re)
    b = torch.einsum("bsd,ed->bse", x, dft_hid_im)
    y = torch.einsum("ts,bse->bte", dft_seq_re, a) - torch.einsum("ts,bse->bte", dft_seq_im, b)
    return y
```

```python
import sys

class Asm:
    def __init__(self): self.L = []
    def __call__(self, s): self.L.append("  " + s)
    def label(self, s): self.L.append(s + ":")
    def raw(self, s): self.L.append(s)
    def text(self): return "\n".join(self.L) + "\n"

NS = 4
STAGE = 32768
EPI = NS * STAGE
NK1, NK2 = 16, 32
KNAME = "standalone__spectral_fnet__prompt_kernel"

def gen(out, stamps=False, jump1=4, jump2=4, pfC=True, pf_s0=3, pf_step=2, tsc="sc1", dbgstamps=False, poll_sleep=2):
    a = Asm()
    a.raw("; @launch grid=(256,1,1) block=(512,1,1) lds=163840")
    a.raw('.amdgcn_target "amdgcn-amd-amdhsa--gfx950"')
    a.raw(".text")
    a.raw(f".globl {KNAME}")
    a.raw(".p2align 8")
    a.raw(f".type {KNAME},@function")
    a.label(KNAME)
    def stamp(idx):
        if stamps: a(f"s_memrealtime s[{80+2*idx}:{81+2*idx}]")
    a("s_cmp_ge_u32 s2, 256")
    a("s_cbranch_scc1 L_done")
    stamp(0)
    a("s_load_dwordx16 s[32:47], s[0:1], 0")
    a("v_lshrrev_b32 v1, 6, v0")
    a("v_and_b32 v2, 63, v0")
    a("v_readfirstlane_b32 s20, v1")
    a("s_and_b32 s21, s2, 7")
    a("s_lshr_b32 s22, s2, 3")
    a("s_and_b32 s3, s21, 1")
    a("s_lshl_b32 s24, s3, 3")
    a("s_and_b32 s48, s22, 7")
    a("s_add_u32 s24, s24, s48")
    a("s_lshr_b32 s49, s21, 1")
    a("s_lshl_b32 s25, s49, 2")
    a("s_lshr_b32 s48, s22, 3")
    a("s_add_u32 s25, s25, s48")
    a("s_lshr_b32 s23, s25, 3")
    a("s_and_b32 s26, s25, 7")
    a("s_lshl_b32 s27, s49, 2")
    a("s_and_b32 s48, s22, 3")
    a("s_add_u32 s27, s27, s48")
    a("s_lshr_b32 s28, s22, 2")
    a("s_waitcnt lgkmcnt(0)")
    a("s_mov_b32 s4, s32"); a("s_mov_b32 s5, s33"); a("s_mov_b32 s6, 0x400000"); a("s_mov_b32 s7, 0x20000")
    a("s_cmp_eq_u32 s23, 0")
    a("s_cselect_b32 s8, s38, s40"); a("s_cselect_b32 s9, s39, s41"); a("s_mov_b32 s10, 0x200000"); a("s_mov_b32 s11, 0x20000")
    a("s_mov_b32 s12, s46"); a("s_mov_b32 s13, s47"); a("s_mov_b32 s14, 0x800000"); a("s_mov_b32 s15, 0x20000")
    a("s_cmp_eq_u32 s3, 0")
    a("s_cselect_b32 s16, s34, s36"); a("s_cselect_b32 s17, s35, s37"); a("s_mov_b32 s18, 0x800000"); a("s_mov_b32 s19, 0x20000")
    a("s_mov_b32 s64, s44"); a("s_mov_b32 s65, s45"); a("s_mov_b32 s66, 256"); a("s_mov_b32 s67, 0x20000")
    a("s_cmp_ge_u32 s20, 4")
    a("s_cbranch_scc1 L_loader")

    XS, YS, ACC = 32, 96, 160
    a("s_mov_b32 s56, s42"); a("s_mov_b32 s57, s43"); a("s_mov_b32 s58, 0x400000"); a("s_mov_b32 s59, 0x20000")
    a("s_add_u32 s60, s46, 0x800000"); a("s_addc_u32 s61, s47, 0"); a("s_mov_b32 s62, 0x400000"); a("s_mov_b32 s63, 0x20000")
    a("s_and_b32 s50, s20, 1")
    a("s_lshr_b32 s51, s20, 1")
    a("s_xor_b32 s52, s2, 1")
    a("s_lshl_b32 s52, s52, 2")
    a("s_add_u32 s52, s52, s20")
    a("s_lshl_b32 s52, s52, 12")
    a("v_lshlrev_b32 v24, 4, v2")
    a("v_add_u32 v24, s52, v24")
    a("v_mov_b32 v4, -1"); a("v_mov_b32 v5, -1"); a("v_mov_b32 v6, -1"); a("v_mov_b32 v7, -1")
    for q in range(4):
        a(f"buffer_store_dwordx4 v[4:7], v24, s[60:63], 0 offen offset:{q*1024} sc1")
    a("v_and_b32 v3, 31, v2")
    a("v_lshrrev_b32 v25, 5, v2")
    for (sw, base, dst) in (("s50", 0, 8), ("s51", 16384, 16)):
        a(f"s_lshl_b32 s52, {sw}, 6")
        a("v_add_u32 v26, s52, v3")
        a("v_lshrrev_b32 v27, 1, v26")
        a("v_and_b32 v27, 7, v27")
        a("v_xor_b32 v27, v27, v25")
        a("v_lshlrev_b32 v27, 4, v27")
        a("v_lshlrev_b32 v26, 7, v26")
        a("v_add_u32 v26, v26, v27")
        if base: a(f"v_add_u32 v26, {base}, v26")
        for kk in range(4):
            a(f"v_xor_b32 v{dst+kk}, {kk<<5}, v26")
            a(f"v_add_u32 v{dst+4+kk}, 0x10000, v{dst+kk}")
    if pfC:
        a("s_lshl_b32 s52, s49, 9")
        a("s_lshl_b32 s53, s22, 4")
        a("s_add_u32 s52, s52, s53")
        a("v_lshrrev_b32 v26, 2, v2")
        a("v_add_u32 v26, s52, v26")
        a("v_lshlrev_b32 v26, 12, v26")
        a("v_and_b32 v27, 3, v2")
        a("v_lshlrev_b32 v27, 7, v27")
        a("v_add_u32 v28, v26, v27")
        a(f"s_mul_i32 s68, s20, {pf_step}")
        a(f"s_add_u32 s68, s68, {pf_s0}")
        a("s_lshl_b32 s69, s20, 9")
        a("s_mov_b32 s70, 0")
    def zero_acc():
        for i in range(64): a(f"v_mov_b32 v{ACC+i}, 0")
    zero_acc()
    def frag_reg(st, kk, op, i): return st + kk*16 + op*8 + i*4
    def reads(st, slot):
        out = []
        for kk in range(4):
            for (op, i) in ((0,0),(1,0),(1,1),(0,1)):
                r = frag_reg(st, kk, op, i)
                off = slot*STAGE + i*4096
                areg = (8 if op == 0 else 16) + kk
                if off >= 65536: off -= 65536; areg += 4
                out.append(f"ds_read_b128 v[{r}:{r+3}], v{areg} offset:{off}")
        return out
    def mfmas(st):
        out = []
        for kk in range(4):
            for (mi, ni) in ((0,0),(0,1),(1,1),(1,0)):
                c = ACC + (mi*2+ni)*16
                ra = frag_reg(st, kk, 0, mi); rb = frag_reg(st, kk, 1, ni)
                out.append(f"v_mfma_f32_32x32x16_bf16 v[{c}:{c+15}], v[{ra}:{ra+3}], v[{rb}:{rb+3}], v[{c}:{c+15}]")
        return out
    lc = [0]
    def tile_iter(cur, nxt, slot_next, touch):
        a("s_barrier")
        M = mfmas(cur); R = reads(nxt, slot_next)
        for i in range(16):
            a(M[i])
            if i < 8:
                a(R[2*i]); a(R[2*i+1])
            if i == 9 and touch:
                lc[0] += 1
                a("s_cmp_eq_u32 s70, s68")
                a(f"s_cbranch_scc0 L_nt{lc[0]}")
                a("buffer_load_dword v29, v28, s[16:19], s69 offen")
                a(f"s_add_u32 s68, s68, {4*pf_step}")
                a("s_add_u32 s69, s69, 2048")
                a.label(f"L_nt{lc[0]}")
                a("s_add_u32 s70, s70, 1")
        a("s_waitcnt lgkmcnt(0)")
    def mainloop(P, NK, touch):
        a("s_barrier")
        for r in reads(XS, 0): a(r)
        a("s_waitcnt lgkmcnt(0)")
        a(f"s_mov_b32 s53, {(NK-4)//4}")
        a.label(f"{P}_cloop")
        for u in range(4):
            tile_iter(XS if u % 2 == 0 else YS, YS if u % 2 == 0 else XS, (u+1) % NS, touch)
        a("s_sub_u32 s53, s53, 1")
        a("s_cmp_lg_u32 s53, 0")
        a(f"s_cbranch_scc1 {P}_cloop")
        for u in range(3):
            tile_iter(XS if u % 2 == 0 else YS, YS if u % 2 == 0 else XS, (u+1) % NS, touch)
        for m in mfmas(YS): a(m)
    mainloop("L_p1", NK1, pfC)
    stamp(1)
    a(f"s_lshl_b32 s52, s20, 13")
    a(f"s_add_u32 s52, s52, {EPI}")
    a("v_lshlrev_b32 v26, 7, v3")
    a("v_lshlrev_b32 v27, 3, v25")
    a("v_add_u32 v26, v26, v27")
    a("v_add_u32 v26, s52, v26")
    a("v_and_b32 v27, 7, v3")
    a("v_lshlrev_b32 v27, 4, v27")
    for c in range(8):
        a(f"v_xor_b32 v30, {c*16}, v27")
        a(f"v_add_u32 v{224+c}, v26, v30")
    a("v_lshrrev_b32 v26, 3, v2")
    a("v_and_b32 v27, 7, v2")
    a("v_xor_b32 v30, v26, v27")
    a("v_lshlrev_b32 v30, 4, v30")
    a("v_lshlrev_b32 v232, 7, v26")
    a("v_add_u32 v232, v232, v30")
    a("v_add_u32 v232, s52, v232")
    a("s_lshl_b32 s54, s26, 7")
    a("s_lshl_b32 s55, s51, 6")
    a("s_add_u32 s54, s54, s55")
    a("v_add_u32 v30, s54, v26")
    a("v_lshlrev_b32 v30, 13, v30")
    a("v_lshlrev_b32 v31, 4, v27")
    a("v_add_u32 v30, v30, v31")
    a("s_lshl_b32 s54, s23, 12")
    a("s_lshl_b32 s55, s24, 8")
    a("s_add_u32 s54, s54, s55")
    a("s_lshl_b32 s55, s50, 7")
    a("s_add_u32 s54, s54, s55")
    a("v_add_u32 v233, s54, v30")
    a("s_lshl_b32 s54, s27, 7")
    a("s_lshl_b32 s55, s51, 6")
    a("s_add_u32 s54, s54, s55")
    a("s_lshl_b32 s55, s3, 5")
    a("s_add_u32 s54, s54, s55")
    a("v_add_u32 v30, s54, v26")
    a("v_lshlrev_b32 v30, 11, v30")
    a("v_add_u32 v30, v30, v31")
    a("s_lshl_b32 s54, s28, 8")
    a("s_lshl_b32 s55, s50, 7")
    a("s_add_u32 s54, s54, s55")
    a("v_add_u32 v234, s54, v30")
    a("s_mul_i32 s55, s23, 0x80008000")
    for mi in range(2):
        for ni in range(2):
            c = ACC + (mi*2+ni)*16
            for i in range(4):
                t = 32 + ((mi*2+ni)*4 + i)*2
                a(f"v_cvt_pk_bf16_f32 v{t}, v{c+4*i}, v{c+4*i+1}")
                a(f"v_cvt_pk_bf16_f32 v{t+1}, v{c+4*i+2}, v{c+4*i+3}")
                a(f"v_xor_b32 v{t}, s55, v{t}")
                a(f"v_xor_b32 v{t+1}, s55, v{t+1}")
                a(f"ds_write_b64 v{224+mi*4+i}, v[{t}:{t+1}] offset:{ni*4096}")
    a("s_waitcnt lgkmcnt(0)")
    for q in range(8):
        a(f"ds_read_b128 v[{64+4*q}:{67+4*q}], v232 offset:{q*1024}")
    for q in range(8):
        a(f"s_waitcnt lgkmcnt({7-q})")
        a(f"s_mov_b32 s55, {(q*8) << 13}")
        a(f"buffer_store_dwordx4 v[{64+4*q}:{67+4*q}], v233, s[12:15], s55 offen sc1")
    zero_acc()
    a("s_waitcnt vmcnt(0)")
    stamp(2)
    a("s_barrier")
    mainloop("L_p2", NK2, False)
    stamp(3)
    a("s_nop 7"); a("s_nop 7")
    def exchange(keep):
        send = 1 - keep
        for mi in range(2):
            c = ACC + (mi*2+send)*16
            for j in range(8):
                a(f"v_cvt_pk_bf16_f32 v{32+mi*8+j}, v{c+2*j}, v{c+2*j+1}")
        for j in range(16):
            a(f"v_min_u32 v{32+j}, -2, v{32+j}")
        for q in range(4):
            a(f"buffer_store_dwordx4 v[{32+4*q}:{35+4*q}], v24, s[60:63], 0 offen offset:{q*1024} sc1")
        for mi in range(2):
            c = ACC + (mi*2+keep)*16
            for j in range(8):
                a(f"v_cvt_pk_bf16_f32 v{48+mi*8+j}, v{c+2*j}, v{c+2*j+1}")
    a("s_cmp_eq_u32 s3, 0")
    a("s_cbranch_scc0 L_ex1")
    exchange(0)
    a("s_branch L_ex2")
    a.label("L_ex1")
    exchange(1)
    a.label("L_ex2")
    a("v_xor_b32 v26, 0x4000, v24")
    a("s_mov_b32 s54, 0x40000")
    a.label("L_xpoll")
    for q in range(4):
        a(f"buffer_load_dwordx4 v[{64+4*q}:{67+4*q}], v26, s[60:63], 0 offen offset:{q*1024} sc1")
    a("s_waitcnt vmcnt(0)")
    a("v_max3_u32 v27, v64, v65, v66")
    for j in range(67, 79, 2):
        a(f"v_max3_u32 v27, v27, v{j}, v{j+1}")
    a("v_max_u32 v27, v27, v79")
    a("v_cmp_eq_u32 vcc, -1, v27")
    a("s_sub_u32 s54, s54, 1")
    a("s_cmp_eq_u32 s54, 0")
    a("s_cbranch_scc1 L_xdone")
    a("s_cbranch_vccnz L_xpoll")
    a.label("L_xdone")
    stamp(4)
    for j in range(16):
        a(f"v_lshlrev_b32 v26, 16, v{48+j}")
        a(f"v_lshlrev_b32 v27, 16, v{64+j}")
        a(f"v_and_b32 v30, 0xffff0000, v{48+j}")
        a(f"v_and_b32 v31, 0xffff0000, v{64+j}")
        a("v_add_f32 v26, v26, v27")
        a("v_add_f32 v30, v30, v31")
        a(f"v_cvt_pk_bf16_f32 v{80+j}, v26, v30")
    for mi in range(2):
        for i in range(4):
            t = 80 + mi*8 + 2*i
            a(f"ds_write_b64 v{224+mi*4+i}, v[{t}:{t+1}]")
    a("s_waitcnt lgkmcnt(0)")
    for q in range(4):
        a(f"ds_read_b128 v[{64+4*q}:{67+4*q}], v232 offset:{q*1024}")
    for q in range(4):
        a(f"s_waitcnt lgkmcnt({3-q})")
        a(f"s_mov_b32 s55, {(q*8) << 11}")
        a(f"buffer_store_dwordx4 v[{64+4*q}:{67+4*q}], v234, s[56:59], s55 offen")
    if stamps:
        a("s_waitcnt vmcnt(0)")
        stamp(5)
        a("s_waitcnt lgkmcnt(0)")
        a("v_cmp_eq_u32 vcc, 0, v0")
        a("s_and_saveexec_b64 s[72:73], vcc")
        a("s_cbranch_execz L_done")
        a("s_add_u32 s12, s46, 0x8000000"); a("s_addc_u32 s13, s47, 0"); a("s_mov_b32 s14, 0x100000")
        for i in range(12): a(f"v_mov_b32 v{8+i}, s{80+i}")
        a("s_lshl_b32 s55, s2, 6")
        a("v_mov_b32 v1, s55")
        a("buffer_store_dwordx4 v[8:11], v1, s[12:15], 0 offen")
        a("buffer_store_dwordx4 v[12:15], v1, s[12:15], 0 offen offset:16")
        a("buffer_store_dwordx4 v[16:19], v1, s[12:15], 0 offen offset:32")
    a("s_endpgm")

    a.label("L_loader")
    a("s_sub_u32 s20, s20, 4")
    a("v_lshrrev_b32 v3, 3, v2")
    a("v_and_b32 v4, 7, v2")
    a("s_lshl_b32 s50, s20, 5")
    a("s_lshl_b32 s52, s24, 18")
    a("s_lshl_b32 s53, s26, 18")
    a("s_lshl_b32 s54, s28, 20")
    a("s_lshl_b32 s55, s3, 12")
    a("s_add_u32 s54, s54, s55")
    a("s_lshl_b32 s55, s27, 19")
    for p in range(4):
        a("v_add_u32 v5, s50, v3")
        if p: a(f"v_add_u32 v5, {p*8}, v5")
        a("v_lshrrev_b32 v6, 1, v5")
        a("v_and_b32 v6, 7, v6")
        a("v_xor_b32 v6, v6, v4")
        a("v_lshlrev_b32 v6, 4, v6")
        if p: a(f"v_subrev_u32 v6, {p*1024}, v6")
        for (sh, sb, dst) in ((11, "s52", 8), (11, "s53", 12), (13, "s54", 16), (12, "s55", 20)):
            a(f"v_lshlrev_b32 v7, {sh}, v5")
            a("v_add_u32 v7, v7, v6")
            a(f"v_add_u32 v{dst+p}, {sb}, v7")
    a("s_lshl_b32 s52, s20, 12")
    a("s_lshr_b32 s53, s22, 3"); a("s_add_u32 s53, s53, s22"); a("s_and_b32 s56, s53, 3")
    a("s_lshr_b32 s53, s22, 2"); a("s_add_u32 s53, s53, s22"); a("s_and_b32 s57, s53, 3")
    a("s_mov_b32 s58, 0")
    def koff(phi, jump, NK, dst="s53", step="s58"):
        a(f"s_and_b32 s59, {step}, 3")
        a(f"s_cmp_eq_u32 s59, {phi}")
        a(f"s_cselect_b32 s59, {jump}, 0")
        a(f"s_add_u32 s59, s59, {step}")
        a(f"s_and_b32 s59, s59, {NK-1}")
        a(f"s_lshl_b32 {dst}, s59, 7")
    def issueA(srd, vb, aux="", ko="s53", lds="s52"):
        a(f"s_mov_b32 m0, {lds}")
        a("s_nop 0")
        for p in range(4):
            a(f"buffer_load_dwordx4 v{vb+p}, {srd}, {ko} offen offset:{p*1024} {aux} lds")
    def issueB(srd, vb, aux="", ko="s53", lds="s52"):
        a(f"s_add_u32 m0, {lds}, 16384")
        a("s_nop 0")
        for p in range(4):
            a(f"buffer_load_dwordx4 v{vb+p}, {srd}, {ko} offen offset:{p*1024} {aux} lds")
    def adv():
        a("s_add_u32 s58, s58, 1")
        a(f"s_add_u32 s52, s52, {STAGE}")
        a(f"s_and_b32 s52, s52, {NS*STAGE-1}")
    def issue1():
        koff("s56", jump1, NK1); issueA("s[4:7]", 8); issueB("s[8:11]", 12); adv()
    def issue2():
        koff("s57", jump2, NK2); issueA("s[12:15]", 16, tsc); issueB("s[16:19]", 20); adv()
    for t in range(NS): issue1()
    a("s_lshl_b32 s60, s3, 3"); a("s_add_u32 s60, s60, s28"); a("s_lshl_b32 s60, s60, 4")
    a("v_lshlrev_b32 v24, 2, v2")
    a("v_and_b32 v24, 15, v24")
    a("v_add_u32 v24, s60, v24")
    a("v_mov_b32 v25, 0")
    a("v_mov_b32 v26, 0x01010101")
    a("v_cmp_gt_u32 vcc, 4, v2")
    a("s_nop 1")
    a("v_cndmask_b32 v25, v25, v26, vcc")
    a("s_xor_b32 s61, s24, 8"); a("s_lshl_b32 s62, s25, 4"); a("s_add_u32 s61, s61, s62")
    a("s_and_b32 s62, s61, 3"); a("s_lshl_b32 s62, s62, 3"); a("s_lshl_b32 s62, 1, s62")
    a("s_andn2_b32 s61, s61, 3")
    a("v_mov_b32 v26, s61"); a("v_mov_b32 v27, s62")
    a("v_cmp_eq_u32 vcc, 4, v2")
    a("s_nop 1")
    a("v_cndmask_b32 v24, v24, v26, vcc")
    a("v_cndmask_b32 v25, v25, v27, vcc")
    a(f"s_waitcnt vmcnt({8*(NS-1)})")
    a("s_barrier")
    a(f"s_mov_b32 s63, {NK1-NS}")
    a.label("L_l1loop")
    a(f"s_waitcnt vmcnt({8*(NS-2)})")
    a("s_barrier")
    issue1()
    a("s_sub_u32 s63, s63, 1")
    a("s_cmp_lg_u32 s63, 0")
    a("s_cbranch_scc1 L_l1loop")
    a("s_mov_b32 s58, 0")
    for j, k in enumerate(range(NK1-NS+1, NK1)):
        a(f"s_waitcnt vmcnt({8*(NK1-1-k) + 4*j})")
        a("s_barrier")
        koff("s57", jump2, NK2, dst=f"s{74+j}")
        a(f"s_mov_b32 s{77+j}, s52")
        issueB("s[16:19]", 20, ko=f"s{74+j}")
        adv()
    a("s_barrier")
    stamp(1)
    a("s_cmp_eq_u32 s20, 0")
    a("s_cbranch_scc0 L_noflag")
    a("s_lshl_b32 s63, s25, 4")
    a("s_add_u32 s63, s63, s24")
    a("v_mov_b32 v27, s63")
    a("v_mov_b32 v26, 1")
    a("s_mov_b64 exec, 1")
    a("buffer_store_byte v26, v27, s[64:67], 0 offen sc1")
    a("s_mov_b64 exec, -1")
    a.label("L_noflag")
    a("s_mov_b32 s63, 0x40000")
    a.label("L_poll")
    a("buffer_load_dword v26, v24, s[64:67], 0 offen sc1")
    a("s_waitcnt vmcnt(0)")
    a("v_and_b32 v26, v26, v25")
    a("v_cmp_ne_u32 vcc, v26, v25")
    a("s_sub_u32 s63, s63, 1")
    a("s_cmp_eq_u32 s63, 0")
    a("s_cbranch_scc1 L_pdone")
    a("s_cbranch_vccz L_pdone")
    if poll_sleep: a(f"s_sleep {poll_sleep}")
    a("s_branch L_poll")
    a.label("L_pdone")
    stamp(2)
    for j in range(3):
        issueA("s[12:15]", 16, tsc, ko=f"s{74+j}", lds=f"s{77+j}")
    a("s_waitcnt vmcnt(8)")
    a("s_barrier")
    stamp(3)
    issue2()
    a("s_waitcnt vmcnt(12)")
    a("s_barrier")
    issue2()
    a(f"s_mov_b32 s63, {NK2-NS-1}")
    a.label("L_l2loop")
    a(f"s_waitcnt vmcnt({8*(NS-2)})")
    a("s_barrier")
    issue2()
    a("s_sub_u32 s63, s63, 1")
    a("s_cmp_lg_u32 s63, 0")
    a("s_cbranch_scc1 L_l2loop")
    for k in range(NK2-NS+1, NK2):
        a(f"s_waitcnt vmcnt({8*(NK2-1-k)})")
        a("s_barrier")
    if stamps:
        a("s_waitcnt lgkmcnt(0)")
        a("v_cmp_eq_u32 vcc, 256, v0")
        a("s_and_saveexec_b64 s[72:73], vcc")
        a("s_cbranch_execz L_done")
        a("s_add_u32 s12, s46, 0x8000000"); a("s_addc_u32 s13, s47, 0"); a("s_mov_b32 s14, 0x100000")
        for i in range(8): a(f"v_mov_b32 v{8+i}, s{80+i}")
        a("s_lshl_b32 s55, s2, 6")
        a("s_add_u32 s55, s55, 0x4000")
        a("v_mov_b32 v1, s55")
        a("buffer_store_dwordx4 v[8:11], v1, s[12:15], 0 offen")
        a("buffer_store_dwordx4 v[12:15], v1, s[12:15], 0 offen offset:16")
        a("buffer_store_dwordx4 v[12:15], v1, s[12:15], 0 offen offset:32")
    a.label("L_done")
    a("s_endpgm")
    a.raw('.section .rodata,"a"')
    a.raw(".p2align 6")
    a.raw(f""".amdhsa_kernel {KNAME}
  .amdhsa_next_free_vgpr 240
  .amdhsa_next_free_sgpr 96
  .amdhsa_accum_offset 240
  .amdhsa_group_segment_fixed_size 0
  .amdhsa_kernarg_size 64
  .amdhsa_user_sgpr_count 2
  .amdhsa_user_sgpr_kernarg_segment_ptr 1
  .amdhsa_system_sgpr_workgroup_id_x 1
.end_amdhsa_kernel""")
    open(out, "w").write(a.text())

if __name__ == "__main__":
    gen("v2_st.s", stamps=True)
    gen("v2.s")
```

```python
import gen2
gen2.gen("v2a.s", stamps=True, poll_sleep=30)
gen2.gen("v2b.s", stamps=True, poll_sleep=30, pfC=False)
gen2.gen("v2c.s", stamps=True, poll_sleep=30, pfC=False, jump1=0, jump2=0)
gen2.gen("v2d.s", stamps=True, poll_sleep=100, pfC=False)
```
